```python
import torch

def _softmax(x, axis=-1):
    return torch.softmax(x, dim=axis)

def _gelu(x):
    return torch.nn.functional.gelu(x, approximate='tanh')

def _silu(x):
    return torch.nn.functional.silu(x)

def _sigmoid(x):
    return torch.sigmoid(x)

def _layernorm(x, axis=-1, eps=1e-05):
    m = x.mean(dim=axis, keepdim=True)
    v = x.var(dim=axis, keepdim=True, unbiased=False)
    return (x - m) / torch.sqrt(v + eps)

def _scatter_add(tgt, idx, src, axis=0):
    return tgt.clone().index_add_(axis, idx, src)

def _segment_sum(src, seg, n):
    out = torch.zeros((n,) + src.shape[1:], dtype=src.dtype)
    return out.index_add_(0, seg, src)

def _pad(x, pw):
    flat = tuple((v for pair in reversed(pw) for v in pair))
    return torch.nn.functional.pad(x, flat)
kernel_name = 'adaLN_cond__compressed_kv_cla__geglu_ffn__decode'

def setup_inputs():

    _w = lambda a: (lambda t: t.to(torch.bfloat16) if t.is_floating_point() else t)(torch.as_tensor(a))

    def _A_setup():
        B, H, Sq, Sk, D, M = (1, 32, 1, 16384, 128, 576)
        Dc = 4 * D
        return {'x': _w((lambda *s: torch.randn(*s, dtype=torch.bfloat16) * 0.05)(B, Sq, M)), 'c_kv': _w((lambda *s: torch.randn(*s, dtype=torch.bfloat16) * 1.6)(B, Sk, Dc)), 'w_q': _w((lambda *s: torch.randn(*s, dtype=torch.bfloat16) * 0.8)(M, H, D) * M ** (-0.5)), 'w_uk': _w((lambda *s: torch.randn(*s, dtype=torch.bfloat16) * 0.8)(Dc, H, D) * Dc ** (-0.5)), 'w_uv': _w((lambda *s: torch.randn(*s, dtype=torch.bfloat16) * 1.6)(Dc, H, D) * Dc ** (-0.5)), 'w_o': _w((lambda *s: torch.randn(*s, dtype=torch.bfloat16) * 1.6)(H, D, M) * (H * D) ** (-0.5))}
    _A_in = _A_setup()

    def _B_setup():
        B, S, D, F = (1, 1, 576, 4608)
        return {'x': _w((lambda *s: torch.randn(*s, dtype=torch.bfloat16) * 0.05)(B, S, D)), 'w_gate': _w((lambda *s: torch.randn(*s, dtype=torch.bfloat16) * 0.05)(D, F)), 'w_up': _w((lambda *s: torch.randn(*s, dtype=torch.bfloat16) * 0.05)(D, F)), 'w_down': _w((lambda *s: torch.randn(*s, dtype=torch.bfloat16) * 0.05)(F, D))}
    _B_in = _B_setup()
    return {'A_x': _A_in['x'], 'A_c_kv': _A_in['c_kv'], 'A_w_q': _A_in['w_q'], 'A_w_uk': _A_in['w_uk'], 'A_w_uv': _A_in['w_uv'], 'A_w_o': _A_in['w_o'], 'B_x': _B_in['x'], 'B_w_gate': _B_in['w_gate'], 'B_w_up': _B_in['w_up'], 'B_w_down': _B_in['w_down'], 'c': _w((lambda *s: torch.randn(*s, dtype=torch.bfloat16) * 0.1)(1, 576) * 8.0), 'w_mod': _w((lambda *s: torch.randn(*s, dtype=torch.bfloat16) * 0.1)(576, 6 * 576) * 576 ** (-0.5) * 8.0)}

def reference(A_x, A_c_kv, A_w_q, A_w_uk, A_w_uv, A_w_o, B_x, B_w_gate, B_w_up, B_w_down, c, w_mod):

    def _A_ref(x, c_kv, w_q, w_uk, w_uv, w_o):
        B, Sq, M = (x.shape[0], x.shape[1], x.shape[2])
        Sk = c_kv.shape[1]
        H, D = (w_q.shape[1], w_q.shape[2])
        q = torch.einsum('bqm,mhd->bhqd', x, w_q)
        k = torch.einsum('bkc,chd->bhkd', c_kv, w_uk)
        v = torch.einsum('bkc,chd->bhkd', c_kv, w_uv)
        scores = torch.einsum('bhqd,bhkd->bhqk', q, k) * D ** (-0.5)
        off = Sk - Sq
        qi = torch.arange(Sq)[:, None]
        kj = torch.arange(Sk)[None, :]
        cmask = kj <= qi + off
        scores = torch.where(cmask[None, None], scores, -1000000000.0)
        p = _softmax(scores, axis=-1)
        ctx = torch.einsum('bhqk,bhkd->bhqd', p, v)
        return torch.einsum('bhqd,hdm->bqm', ctx, w_o)

    def _B_ref(x, w_gate, w_up, w_down):
        return _gelu(x @ w_gate) * (x @ w_up) @ w_down
    x = A_x
    mod = (_silu(c) @ w_mod).reshape(c.shape[0], 6, 1, -1)
    sa, ca, ga, sb, cb, gb = (mod[:, 0].clone(), mod[:, 1].clone(), mod[:, 2].clone(), mod[:, 3].clone(), mod[:, 4].clone(), mod[:, 5].clone())
    h = _layernorm(x, axis=-1) * (1 + ca) + sa
    x = x + ga * _A_ref(h, A_c_kv, A_w_q, A_w_uk, A_w_uv, A_w_o)
    h = _layernorm(x, axis=-1) * (1 + cb) + sb
    x = x + gb * _B_ref(h, B_w_gate, B_w_up, B_w_down)
    return x
```

```python
import re

_REG = re.compile(r'^(-|abs\()?\|?([vsa])(\d+)\)?\|?$')
_RNG = re.compile(r'^(-|abs\()?([vsa])\[(\d+):(\d+)\]\)?$')


def regs_of(tok):
    tok = tok.strip()
    m = _REG.match(tok)
    if m:
        return {(m.group(2), int(m.group(3)))}
    m = _RNG.match(tok)
    if m:
        return {(m.group(2), i) for i in range(int(m.group(3)), int(m.group(4)) + 1)}
    if tok in ('vcc', 'vcc_lo', 'vcc_hi'):
        return {('vcc', 0)}
    if tok in ('exec', 'exec_lo', 'exec_hi'):
        return {('exec', 0)}
    if tok == 'm0':
        return {('m0', 0)}
    return set()


def split_ops(rest):
    out, depth, cur = [], 0, ''
    for ch in rest:
        if ch in '[(':
            depth += 1
        elif ch in '])':
            depth -= 1
        if ch == ',' and depth == 0:
            out.append(cur.strip())
            cur = ''
        else:
            cur += ch
    if cur.strip():
        out.append(cur.strip())
    return out


TRANS = ('v_exp_f32', 'v_log_f32', 'v_rcp_f32', 'v_rsq_f32', 'v_sqrt_f32', 'v_sin_f32', 'v_cos_f32', 'v_rcp_iflag_f32')


class Ins:
    __slots__ = ('text', 'op', 'wr', 'rd', 'valu', 'salu', 'vmem', 'ds', 'mfma', 'passes', 'dpp', 'trans', 'perml',
                 'rdlane', 'dot', 'srcc', 'srcab', 'wide_store', 'lds_dma', 'states', 'lanesel', 'sdwa')

    def __init__(self, text):
        self.text = text
        t = text.strip()
        sp = t.split(None, 1)
        op = sp[0]
        rest = sp[1] if len(sp) > 1 else ''
        ops = split_ops(rest)
        mods = ''
        if ops:
            last = ops[-1]
            depth = 0
            for i, ch in enumerate(last):
                if ch in '[(':
                    depth += 1
                elif ch in '])':
                    depth -= 1
                elif ch == ' ' and depth == 0:
                    mods = last[i:]
                    last = last[:i]
                    break
            ops[-1] = last
        base = re.sub(r'_(e32|e64|dpp|sdwa)$', '', op)
        self.op = base
        self.valu = base.startswith('v_')
        self.salu = base.startswith('s_')
        self.vmem = base.startswith(('buffer_', 'global_', 'flat_'))
        self.ds = base.startswith('ds_')
        self.mfma = base.startswith('v_mfma')
        self.passes = 0
        if self.mfma:
            self.valu = False
            self.passes = 8 if '32x32' in base else 4
        self.dpp = op.endswith('_dpp') or 'quad_perm' in mods or 'row_' in mods
        self.sdwa = op.endswith('_sdwa') or 'op_sel:' in mods
        self.trans = base in TRANS
        self.perml = base.startswith('v_permlane')
        self.rdlane = base in ('v_readlane_b32', 'v_readfirstlane_b32')
        self.dot = base.startswith('v_dot')
        self.lds_dma = self.vmem and ' lds' in (mods + ' ')
        self.wide_store = False
        self.srcc = set()
        self.srcab = set()
        self.lanesel = set()
        self.states = 1
        R = [regs_of(o) for o in ops]
        wr, rd = set(), set()
        if base == 's_nop':
            self.states = int(ops[0], 0) + 1
        elif self.mfma:
            wr = R[0]
            self.srcab = R[1] | R[2]
            self.srcc = R[3]
            rd = self.srcab | self.srcc
        elif self.valu:
            if self.perml:
                wr = R[0] | R[1]
                rd = R[0] | R[1]
            elif base.startswith('v_cmpx'):
                wr = R[0] | {('exec', 0)}
                rd = set().union(*R[1:])
            elif base in ('v_add_co_u32', 'v_sub_co_u32', 'v_addc_co_u32', 'v_subb_co_u32', 'v_div_scale_f32', 'v_mad_u64_u32'):
                wr = R[0] | R[1]
                rd = set().union(*R[2:])
            elif base == 'v_nop':
                pass
            else:
                wr = R[0]
                rd = set().union(*R[1:]) if len(R) > 1 else set()
                if base in ('v_fmac_f32', 'v_dot2c_f32_bf16', 'v_writelane_b32') or self.dpp or self.sdwa:
                    rd |= R[0]
                if base in ('v_readlane_b32', 'v_writelane_b32'):
                    self.lanesel = R[2]
        elif self.vmem:
            if 'load' in base and not self.lds_dma:
                wr = R[0]
                rd = set().union(*R[1:])
            else:
                rd = set().union(*R)
                if 'store' in base and ('x3' in base or 'x4' in base):
                    self.wide_store = R[0] if base.startswith('buffer') else R[1]
            if self.lds_dma:
                rd |= {('m0', 0)}
        elif self.ds:
            if 'read' in base or 'permute' in base or 'swizzle' in base:
                wr = R[0]
                rd = set().union(*R[1:])
            else:
                rd = set().union(*R)
        elif self.salu:
            if base.startswith(('s_cmp', 's_bitcmp', 's_cbranch', 's_branch', 's_waitcnt', 's_barrier', 's_endpgm', 's_setprio', 's_sleep')):
                rd = set().union(*R) if R else set()
            else:
                wr = R[0] if R else set()
                rd = set().union(*R[1:]) if len(R) > 1 else set()
                if 'saveexec' in base:
                    wr = wr | {('exec', 0)}
        self.wr, self.rd = wr, rd


def _v(s):
    return {r for r in s if r[0] in ('v', 'a')}


def _s(s):
    return {r for r in s if r[0] in ('s', 'vcc')}


def need(p, c):
    n = 0
    if p.valu:
        ws = _s(p.wr)
        wv = _v(p.wr)
        if ws:
            if c.vmem and ws & c.rd:
                n = max(n, 5)
            if c.valu and ws & c.lanesel:
                n = max(n, 4)
            if c.valu and ws & c.rd:
                n = max(n, 2)
        if ('exec', 0) in p.wr:
            if c.dpp:
                n = max(n, 5)
            if c.mfma or c.perml or c.rdlane or c.op == 'v_writelane_b32':
                n = max(n, 4)
            if c.valu and ('exec', 0) in c.rd:
                n = max(n, 2)
        if wv:
            if c.dpp and wv & c.rd:
                n = max(n, 2)
            if c.perml and wv & c.rd:
                n = max(n, 2)
            if c.rdlane and wv & c.rd:
                n = max(n, 1)
            if c.mfma and wv & c.rd:
                n = max(n, 2)
            if p.trans and c.valu and not c.trans and wv & c.rd:
                n = max(n, 1)
            if p.trans and (c.vmem or c.ds) and wv & c.rd:
                n = max(n, 1)
            if p.sdwa and c.valu and wv & (c.rd | c.wr):
                n = max(n, 1)
            if p.dot:
                if c.op == p.op:
                    if wv & (c.rd - c.wr):
                        n = max(n, 3)
                elif wv & (c.rd | c.wr):
                    n = max(n, 3)
    if p.mfma:
        P = p.passes
        if c.mfma:
            if p.wr & c.srcc:
                if not (p.wr == c.srcc and p.passes == c.passes):
                    n = max(n, P + 2)
            if p.wr & c.srcab:
                n = max(n, P + 4)
            if p.wr & c.wr and not (p.wr == c.srcc and p.passes == c.passes):
                n = max(n, P + 2)
        elif p.wr & (c.rd | c.wr):
            n = max(n, P + 4)
        if c.valu and p.srcc & c.wr:
            n = max(n, P - 1)
    if p.salu and ('m0', 0) in p.wr and (c.lds_dma or 'addtid' in c.op):
        n = max(n, 1)
    if p.wide_store and p.wide_store & c.wr:
        n = max(n, 2 if (c.valu or c.mfma) else 1)
    return n


def worst(p):
    if p.mfma:
        return p.passes + 4
    if p.valu:
        if p.wr == {('vcc', 0)}:
            return 0
        if _s(p.wr) or ('exec', 0) in p.wr:
            return 5
        return 3 if p.dot else 2
    if p.wide_store:
        return 2
    if p.salu and ('m0', 0) in p.wr:
        return 1
    return 0


class Asm:
    def __init__(self):
        self.lines = []
        self.hist = []
        self.nlab = 0

    def raw(self, s):
        self.lines.append(s)

    def comment(self, s):
        self.lines.append('    ; ' + s)

    def _push(self, ins):
        self.lines.append('    ' + ins.text)
        self.hist = [(p, d + ins.states) for p, d in self.hist if d + ins.states < 16]
        self.hist.append((ins, 0))

    def _nop(self, n):
        while n > 0:
            k = min(n, 16)
            self._push(Ins('s_nop %d' % (k - 1)))
            n -= k

    def __call__(self, text):
        for line in text.strip().split('\n'):
            line = line.split(';')[0].strip()
            if not line:
                continue
            if line.endswith(':'):
                self.label(line[:-1])
                continue
            ins = Ins(line)
            if ins.op.startswith(('s_cbranch', 's_branch')):
                n = max([worst(p) - d - 1 for p, d in self.hist] + [0])
                self._nop(n)
            else:
                n = max([need(p, ins) - d for p, d in self.hist] + [0])
                self._nop(n)
            self._push(ins)
            if ins.op in ('s_branch', 's_endpgm'):
                self.hist = []

    def label(self, name):
        self.lines.append(name + ':')

    def newlabel(self, pfx='L'):
        self.nlab += 1
        return '%s_%d' % (pfx, self.nlab)

    def text(self):
        return '\n'.join(self.lines) + '\n'


def vr(a, n=1):
    return 'v%d' % a if n == 1 else 'v[%d:%d]' % (a, a + n - 1)


def sr(a, n=1):
    return 's%d' % a if n == 1 else 's[%d:%d]' % (a, a + n - 1)
```

```python
import sys, struct, math
from asmlib import Asm, vr, sr

NAME = 'adaLN_cond__compressed_kv_cla__geglu_ffn__decode'
OPT = dict(diag=0)
for arg in sys.argv[2:]:
    k, v = arg.split('=')
    OPT[k] = int(v, 0)
DIAG = OPT['diag']

E1, E15, E2, ST1, EA2, ST2, EB, GG, EC, ED, TS, EA1 = (0x8000, 0x12000, 0x22000, 0x32000, 0x42000, 0xC2000, 0xC4000,
                                                      0xD4000, 0xD8000, 0xE0000, 0x180000, 0x200000)
WS_BYTES = 0x800000
LIMIT = 20000

sX, sS, sW, sTAG, sCNT = 3, 4, 5, 6, 7
pX, pKV, pWQ, pUK, pUV, pWO, pGATE, pUP, pDOWN, pC, pMOD, pOUT, pWS = 16, 18, 20, 22, 24, 26, 30, 32, 34, 36, 38, 40, 42
WS, R1, R2, R3, R4 = 44, 48, 52, 56, 60
sH, sJ = 64, 65
vL, vN, vG = 1, 2, 3
vM = 4
vS = 8
vA = (10, 14)
vTS = 255


def f32(x):
    return '0x%08x' % struct.unpack('<I', struct.pack('<f', x))[0]


LOG2E = math.log2(math.e)
KAPPA = 128 ** -0.5 * LOG2E
a = Asm()
TSN = []


def ts(name):
    if not DIAG:
        return
    if name not in TSN:
        TSN.append(name)
    a('s_memrealtime s[96:97]\ns_waitcnt lgkmcnt(0)\nv_writelane_b32 v%d, s96, %d' % (vTS, TSN.index(name)))


def finish():
    if DIAG:
        a('''s_mov_b64 exec, -1
        s_lshl_b32 s8, s2, 3
        s_add_u32 s8, s8, s%d
        s_lshl_b32 s8, s8, 7
        s_add_u32 s8, s8, 0x%x
        v_lshlrev_b32 v10, 2, v%d
        s_mov_b32 exec_hi, 0
        buffer_store_dword v%d, v10, %s, s8 offen''' % (sW, TS, vL, vTS, sr(WS, 4)))
    a('s_endpgm')


def srd(s0, ptr, nbytes):
    a('s_mov_b32 s%d, s%d\ns_mov_b32 s%d, s%d\ns_mov_b32 s%d, 0x%x\ns_mov_b32 s%d, 0x00020000'
      % (s0, ptr, s0 + 1, ptr + 1, s0 + 2, nbytes, s0 + 3))


def setexec(lo, hi):
    if lo == 0xffffffff and hi == 0xffffffff:
        a('s_mov_b64 exec, -1')
    else:
        a('s_mov_b32 exec_lo, 0x%x\ns_mov_b32 exec_hi, 0x%x' % (lo, hi))


def ld(dst, n, voff, rsrc, soff, off=0, mod=''):
    op = {1: 'dword', 2: 'dwordx2', 3: 'dwordx3', 4: 'dwordx4', 'h': 'ushort'}[n]
    d = vr(dst, n if n != 'h' else 1)
    so = soff if isinstance(soff, str) else 's%d' % soff
    return 'buffer_load_%s %s, v%d, %s, %s offen%s%s' % (op, d, voff, sr(rsrc, 4), so, ' offset:%d' % off if off else '',
                                                        ' ' + mod if mod else '')


def st(src, voff, soff, off=0, mod='sc1'):
    so = soff if isinstance(soff, str) else 's%d' % soff
    a('buffer_store_dwordx4 %s, v%d, %s, %s offen%s%s' % (vr(src, 4), voff, sr(WS, 4), so,
                                                          ' offset:%d' % off if off else '', ' ' + mod if mod else ''))


def tagcheck(tags, tmp):
    if len(tags) == 1:
        a('v_cmp_ne_u32 vcc, s%d, v%d' % (sTAG, tags[0]))
        return
    a('v_bitop3_b32 v%d, v%d, v%d, s%d bitop3:0x7e' % (tmp, tags[0], tags[1], sTAG))
    for t in tags[2:]:
        a('v_bitop3_b32 v%d, v%d, v%d, s%d bitop3:0xf6' % (tmp, tmp, t, sTAG))
    a('v_cmp_ne_u32 vcc, 0, v%d' % tmp)


def poll(loads, tags, tmp):
    L, D = a.newlabel('PL'), a.newlabel('PD')
    a('s_mov_b32 s%d, %d' % (sCNT, LIMIT))
    a.label(L)
    for l in loads:
        a(l)
    a('s_waitcnt vmcnt(0)')
    tagcheck(tags, tmp)
    a('s_cbranch_vccz %s\ns_sub_u32 s%d, s%d, 1\ns_cbranch_scc0 %s' % (D, sCNT, sCNT, L))
    a.label(D)


def dpp(mod, rm=0xf, bm=0xf):
    return '%s row_mask:0x%x bank_mask:0x%x' % (mod, rm, bm)


def build_a(A, x):
    reg, mod = x
    for j in range(4):
        if mod:
            a('v_and_b32_dpp v%d, v%d, v%d %s' % (A + j, reg, vM + j, dpp(mod)))
        else:
            a('v_and_b32 v%d, v%d, v%d' % (A + j, reg, vM + j))


def diag(steps, accs):
    build_a(vA[0], steps[0][0])
    for t, (x, ws_, wait) in enumerate(steps):
        if t + 1 < len(steps):
            build_a(vA[(t + 1) % 2], steps[t + 1][0])
        if wait is not None:
            a('s_waitcnt vmcnt(%d)' % wait)
        for acc, w in zip(accs, ws_):
            a('v_mfma_f32_16x16x32_bf16 %s, %s, %s, %s' % (vr(acc, 4), vr(vA[t % 2], 4), vr(w, 4),
                                                          vr(acc, 4) if t else '0'))


def gs(acc, datas, sel=None):
    sel = sel or [vS] * len(datas)
    for i, d in enumerate(datas):
        a('v_mfma_f32_16x16x16_bf16 %s, %s, %s, %s' % (vr(acc, 4), vr(sel[i], 2), vr(d, 2), vr(acc, 4) if i else '0'))


def qp(t):
    return 'quad_perm:[%d,%d,%d,%d]' % (t, t, t, t)


def two_row_src(y, v0_, v1_):
    a('v_mov_b32 v%d, v%d\nv_mov_b32 v%d, v%d' % (v0_, y, v1_, y))
    a('v_mov_b32_dpp v%d, v%d %s' % (v0_, y, dpp('row_shr:4', bm=0xa)))
    a('v_mov_b32_dpp v%d, v%d %s' % (v1_, y, dpp('row_shl:4', bm=0x5)))


def xrow(op, r, t):
    a('''v_mov_b32 v{t}, v{r}
    v_permlane16_swap_b32 v{r}, v{t}
    {op} v{r}, v{r}, v{t}
    v_mov_b32 v{t}, v{r}
    v_permlane32_swap_b32 v{r}, v{t}
    {op} v{r}, v{r}, v{t}'''.format(op=op, r=r, t=t))


def inrow(op, regs):
    for k in (8, 4, 2, 1):
        for r in regs:
            a('%s_dpp v%d, v%d, v%d %s' % (op, r, r, r, dpp('row_ror:%d' % k)))


def silu_pair(r, t):
    a('''v_lshlrev_b32 v{r}, 16, v{r}
    v_mul_f32 v{t}, {k}, v{r}
    v_exp_f32 v{t}, v{t}
    v_add_f32 v{t}, 1.0, v{t}
    v_rcp_f32 v{t}, v{t}
    v_mul_f32 v{r}, v{r}, v{t}
    v_cvt_pk_bf16_f32 v{r}, v{r}, v{r}'''.format(r=r, t=t, k=f32(-LOG2E)))


def extract(dst, g0, sh):
    a('''v_cndmask_b32 v{d}, v{g}, v{g1}, vcc
    v_lshlrev_b32 v{d}, v{sh}, v{d}
    v_and_b32 v{d}, 0xffff0000, v{d}'''.format(d=dst, g=g0, g1=g0 + 1, sh=sh))


def gettag():
    a('s_waitcnt lgkmcnt(0)\ns_add_u32 s%d, s%d, 1' % (sTAG, sTAG))


def slab128_write(acc, base, tmp):
    a('''s_mul_i32 s8, s{w}, 528
    v_lshlrev_b32 v{t}, 5, v{n}
    v_lshl_add_u32 v{t}, v{g}, 4, v{t}
    v_add_u32 v{t}, s8, v{t}'''.format(w=sW, t=tmp, n=vN, g=vG))
    return lambda: (setexec(0xffffffff, 0), a('ds_write_b128 v%d, %s offset:%d' % (tmp, vr(acc, 4), base)),
                    setexec(0xffffffff, 0xffffffff))


def slab_final(nread, addr, base, stride, buf, out, nq):
    for i in range(nread):
        a('ds_read_b128 %s, v%d offset:%d' % (vr(buf + 4 * i, 4), addr, base + i * stride))
    for i in range(1, nread):
        a('s_waitcnt lgkmcnt(%d)' % (nread - 1 - i))
        for r in range(4):
            a('v_add_f32 v%d, v%d, v%d' % (buf + r, buf + r, buf + 4 * i + r))
    perms = ['quad_perm:[1,0,3,2]'] + (['quad_perm:[2,3,0,1]'] if nq == 4 else [])
    for p in perms:
        for r in range(4):
            a('v_add_f32_dpp v%d, v%d, v%d %s' % (buf + r, buf + r, buf + r, dpp(p)))
    a('v_cvt_pk_bf16_f32 v%d, v%d, v%d\nv_cvt_pk_bf16_f32 v%d, v%d, v%d' % (out, buf, buf + 1, out + 1, buf + 2, buf + 3))


def tworow_out(acc, lbase, dst_soff, fin_wave):
    setexec(0x00ff00ff, 0xff00ff00)
    a('ds_write_b128 v20, %s offset:%d' % (vr(acc, 4), lbase))
    setexec(0xffffffff, 0xffffffff)
    a('s_waitcnt lgkmcnt(0)\ns_barrier')
    skip = a.newlabel('TR')
    a('s_cmp_lg_u32 s%d, %d\ns_cbranch_scc1 %s' % (sW, fin_wave, skip))
    slab_final(4, 21, lbase, 1280, 216, 24, 4)
    setexec(0x11111111, 0x11111111)
    st(24, 22, dst_soff)
    setexec(0xffffffff, 0xffffffff)
    a.label(skip)


def tworow_addr():
    a('''s_mul_i32 s8, s{w}, 640
    v_lshrrev_b32 v20, 3, v{n}
    v_mul_u32_u24 v20, 320, v20
    v_and_b32 v21, 7, v{n}
    v_lshl_add_u32 v20, v21, 5, v20
    v_and_b32 v21, 1, v{g}
    v_lshl_add_u32 v20, v21, 4, v20
    v_add_u32 v20, s8, v20
    v_lshrrev_b32 v22, 2, v{l}
    v_lshlrev_b32 v22, 4, v22
    v_and_b32 v21, 3, v{l}
    v_mul_u32_u24 v21, 320, v21
    v_add_u32 v21, v21, v22
    v_mov_b32 v26, s{tag}
    v_mov_b32 v27, s{tag}'''.format(w=sW, n=vN, g=vG, l=vL, tag=sTAG))


def tworow_voff(dst, stride, t, rowmul=32):
    a('''v_lshrrev_b32 v{t}, 3, v{n}
    v_mul_u32_u24 v{t}, {rm}, v{t}
    v_add_u32 v{t}, v{t}, v{g}
    v_mul_u32_u24 v{d}, {st}, v{t}
    v_and_b32 v{t}, 7, v{n}
    v_lshl_add_u32 v{d}, v{t}, 4, v{d}'''.format(t=t, n=vN, g=vG, d=dst, st=stride, rm=rowmul))


def prologue():
    a('''s_cmp_ge_u32 s2, 256
    s_cbranch_scc1 L_END
    s_load_dwordx16 s[16:31], s[0:1], 0
    s_load_dwordx8 s[32:39], s[0:1], 64
    s_load_dwordx2 s[40:41], s[0:1], 96
    s_load_dwordx2 s[42:43], s[0:1], 112
    v_and_b32 v{l}, 63, v0
    v_lshrrev_b32 v10, 6, v0
    v_and_b32 v{n}, 15, v0
    v_readfirstlane_b32 s{w}, v10
    v_lshrrev_b32 v{g}, 4, v{l}
    s_and_b32 s{x}, s2, 7
    s_lshr_b32 s{s}, s2, 3
    v_and_b32 v10, 1, v{n}
    v_cmp_eq_u32 vcc, 1, v10
    v_mov_b32 v11, 0xffff
    v_mov_b32 v12, 0xffff0000
    v_cndmask_b32 v13, v11, v12, vcc
    v_bfe_u32 v10, v{n}, 1, 2'''.format(l=vL, n=vN, g=vG, w=sW, x=sX, s=sS))
    for j in range(4):
        a('v_cmp_eq_u32 vcc, %d, v10\nv_cndmask_b32 v%d, 0, v13, vcc' % (j, vM + j))
    a('''v_bfe_u32 v10, v{n}, 2, 1
    v_cmp_eq_u32 vcc, 1, v10
    v_cndmask_b32 v13, v11, v12, vcc
    v_cmp_gt_u32 vcc, 8, v{n}
    v_cndmask_b32 v18, 0, v13, vcc
    v_cndmask_b32 v19, v13, 0, vcc
    v_and_b32 v{s0}, 0x3f803f80, v18
    v_and_b32 v{s1}, 0x3f803f80, v19'''.format(n=vN, s0=vS, s1=vS + 1))
    if DIAG:
        a('v_mov_b32 v%d, 0' % vTS)
    a('s_waitcnt lgkmcnt(0)\ns_load_dword s%d, s[42:43], 0' % sTAG)
    srd(WS, pWS, WS_BYTES)
    a('''s_cmp_lt_u32 s{s}, 9
    s_cbranch_scc1 L_X
    s_sub_u32 s{s}, s{s}, 9
    s_cmp_lt_u32 s{s}, 16
    s_cbranch_scc1 L_Y
    s_sub_u32 s{s}, s{s}, 7
    s_branch L_X'''.format(s=sS))


def role_y():
    a.label('L_Y')
    QW, KW, CW, OW = 32, 56, 32, 96
    a('''s_lshr_b32 s8, s{s}, 2
    s_lshl_b32 s{h}, s{x}, 2
    s_add_u32 s{h}, s{h}, s8
    s_and_b32 s{j}, s{s}, 3
    s_lshl_b32 s66, s{h}, 8'''.format(s=sS, h=sH, x=sX, j=sJ))
    srd(R1, pWQ, 576 * 8192)
    srd(R2, pUK, 512 * 8192)
    srd(R4, pX, 1152)
    a('''v_lshlrev_b32 v28, 13, v{g}
    v_lshl_add_u32 v28, v{n}, 4, v28
    v_lshlrev_b32 v29, 13, v{n}
    v_lshl_add_u32 v29, v{g}, 4, v29
    s_cmp_ge_u32 s{w}, 6
    s_cbranch_scc1 L_YK0'''.format(g=vG, n=vN, w=sW))
    a('''s_mul_i32 s67, s{j}, 144
    s_mul_i32 s8, s{w}, 24
    s_add_u32 s67, s67, s8
    s_lshl_b32 s9, s67, 13
    s_add_u32 s9, s9, s66
    v_lshlrev_b32 v20, 4, v{l}
    v_and_b32 v21, 7, v{n}
    v_min_u32 v21, 5, v21
    v_lshl_add_u32 v22, v21, 2, v{g}
    v_lshlrev_b32 v22, 1, v22
    s_lshl_b32 s10, s67, 1'''.format(j=sJ, w=sW, l=vL, n=vN, g=vG))
    a(ld(72, 4, 20, R4, '0'))
    a(ld(76, 4, 20, R4, '0', off=1024))
    a(ld(80, 'h', 22, R4, 10))
    for t in range(6):
        a(ld(QW + 4 * t, 4, 28, R1, 9, mod='nt'))
        if t < 5:
            a('s_add_u32 s9, s9, 0x8000')
    a.label('L_YK0')
    a('''s_lshl_b32 s8, s{j}, 7
    s_lshl_b32 s9, s{w}, 4
    s_add_u32 s8, s8, s9
    s_lshl_b32 s8, s8, 13
    s_add_u32 s8, s8, s66'''.format(j=sJ, w=sW))
    for u in range(4):
        a(ld(KW + 4 * u, 4, 29, R2, 8, off=64 * u, mod='nt'))
    gettag()
    ts('start')
    a('s_cmp_ge_u32 s%d, 6\ns_cbranch_scc1 L_YQB' % sW)
    a('s_waitcnt vmcnt(10)\nv_mov_b32 v81, 0x3f803f80\nv_mov_b32 v82, 0\nv_mov_b32 v83, 0')
    for i in range(8):
        a('v_dot2_f32_bf16 v82, v%d, v81, v82\nv_dot2_f32_bf16 v83, v%d, v%d, v83' % (72 + i, 72 + i, 72 + i))
    inrow('v_add_f32', [82, 83])
    xrow('v_add_f32', 82, 84)
    xrow('v_add_f32', 83, 84)
    a('''v_mul_f32 v82, {inv}, v82
    v_mul_f32 v83, {inv}, v83
    v_fma_f32 v83, -v82, v82, v83
    v_max_f32 v83, 0, v83
    v_add_f32 v83, {eps}, v83
    v_rsq_f32 v83, v83
    v_lshlrev_b32 v80, 16, v80
    v_sub_f32 v80, v80, v82
    v_mul_f32 v80, v80, v83
    v_mul_f32 v80, {kap}, v80
    v_mov_b32 v81, {kap}
    v_cmp_gt_u32 vcc, 8, v{n}
    v_cndmask_b32 v81, v80, v81, vcc
    v_cndmask_b32 v80, v80, 0, vcc'''.format(inv=f32(1 / 576), eps=f32(1e-5), kap=f32(KAPPA), n=vN))
    a('''v_lshrrev_b32 v22, 3, v{n}
    v_mul_u32_u24 v22, 144, v22
    v_add_u32 v22, v22, v21
    v_lshlrev_b32 v22, 4, v22
    v_mul_u32_u24 v23, 4608, v{g}
    v_add_u32 v22, v22, v23
    s_lshl_b32 s8, s67, 2
    s_add_u32 s10, s8, {e1}
    s_add_u32 s11, s10, {four}'''.format(n=vN, g=vG, e1=E1, four=4 * 4608))
    wr = slab128_write(88, 0, 23)
    poll([ld(72, 3, 22, WS, 10, mod='sc1'), ld(76, 3, 22, WS, 11, mod='sc1')], [74, 78], 84)
    ts('e1')
    gs(84, [72, 76])
    a('v_fma_f32 v84, v84, v81, v80')
    a('v_add_f32_dpp v84, v84, v84 ' + dpp('row_ror:8'))
    a('v_cvt_pk_bf16_f32 v84, v84, v84')
    diag([((84, 'row_newbcast:%d' % t), [QW + 4 * t], None) for t in range(6)], [88])
    wr()
    a.label('L_YQB')
    a('''v_and_b32 v24, 1, v{l}
    v_mul_u32_u24 v24, 528, v24
    v_bfe_u32 v25, v{l}, 1, 4
    v_lshl_add_u32 v24, v25, 5, v24
    v_lshrrev_b32 v26, 5, v{l}
    v_lshl_add_u32 v24, v26, 4, v24
    v_lshlrev_b32 v25, 4, v25
    v_lshl_add_u32 v25, v26, 8, v25
    v_mov_b32 v128, s{tag}
    v_mov_b32 v129, s{tag}
    v_mov_b32 v132, s{tag}
    v_mov_b32 v133, s{tag}
    s_lshl_b32 s68, s{h}, 11
    s_add_u32 s68, s68, {e15}
    s_lshl_b32 s8, s{j}, 9
    s_add_u32 s9, s68, s8
    v_and_b32 v26, 3, v{n}
    v_lshlrev_b32 v26, 9, v26
    v_lshl_add_u32 v26, v{g}, 4, v26
    s_waitcnt lgkmcnt(0)
    s_barrier
    s_cmp_lg_u32 s{w}, 7
    s_cbranch_scc1 L_YK1'''.format(l=vL, tag=sTAG, h=sH, j=sJ, e15=E15, n=vN, g=vG, w=sW))
    slab_final(3, 24, 0, 1056, 136, 130, 2)
    setexec(0x55555555, 0)
    st(128, 25, 9)
    setexec(0, 0x55555555)
    st(130, 25, 9)
    setexec(0xffffffff, 0xffffffff)
    ts('qst')
    a.label('L_YK1')
    a('''s_lshl_b32 s10, s{h}, 11
    s_lshl_b32 s8, s{j}, 9
    s_add_u32 s10, s10, s8
    s_lshl_b32 s8, s{w}, 6
    s_add_u32 s10, s10, s8
    s_add_u32 s10, s10, {e2}
    v_lshlrev_b32 v27, 4, v{g}'''.format(h=sH, j=sJ, w=sW, e2=E2, g=vG))
    loads, tags = [], []
    for u in range(4):
        loads += [ld(72 + 8 * u, 4, 26, WS, 68, off=64 * u, mod='sc1'), ld(76 + 8 * u, 4, 26, WS, 68, off=256 + 64 * u, mod='sc1')]
        tags += [72 + 8 * u + 1, 72 + 8 * u + 7]
    poll(loads, tags, 104)
    ts('e15')
    for u in range(4):
        a('v_mfma_f32_16x16x32_bf16 v[104:107], %s, %s, %s' % (vr(KW + 4 * u, 4), vr(74 + 8 * u, 4), 'v[104:107]' if u else '0'))
    for p in ('quad_perm:[1,0,3,2]', 'quad_perm:[2,3,0,1]'):
        for r in range(4):
            a('v_add_f32_dpp v%d, v%d, v%d %s' % (104 + r, 104 + r, 104 + r, dpp(p)))
    a('v_cvt_pk_bf16_f32 v130, v104, v105\nv_cvt_pk_bf16_f32 v131, v106, v107')
    setexec(0x00010001, 0x00010001)
    st(130, 27, 10)
    setexec(0xffffffff, 0xffffffff)
    ts('kst')
    srd(R1, pUV, 512 * 8192)
    srd(R2, pWO, 4096 * 1152)
    a('''s_lshl_b32 s8, s{j}, 7
    s_lshr_b32 s9, s{w}, 1
    s_lshl_b32 s9, s9, 5
    s_add_u32 s8, s8, s9
    s_and_b32 s9, s{w}, 1
    s_lshl_b32 s9, s9, 2
    s_add_u32 s8, s8, s9
    s_lshl_b32 s8, s8, 13
    s_add_u32 s8, s8, s66'''.format(j=sJ, w=sW))
    for t in range(4):
        a(ld(CW + 4 * t, 4, 28, R1, 8, mod='nt'))
        if t < 3:
            a('s_add_u32 s8, s8, 0x10000')
    a('s_cmp_ge_u32 s%d, 9\ns_cbranch_scc1 L_YRD' % sS)
    tworow_voff(29, 1152, 30)
    a('''s_lshl_b32 s8, s{x}, 9
    s_lshl_b32 s9, s{w}, 6
    s_add_u32 s8, s8, s9
    s_mul_i32 s8, s8, 1152
    s_lshl_b32 s9, s{s}, 7
    s_add_u32 s8, s8, s9'''.format(x=sX, w=sW, s=sS))
    for k in range(8):
        a(ld(OW + 4 * k, 4, 29, R2, 8, mod='nt'))
        if k < 7:
            a('s_add_u32 s8, s8, 4608')
    a.label('L_YRD')
    a('''v_lshrrev_b32 v20, 5, v{l}
    v_bfe_u32 v21, v{l}, 3, 2
    s_lshl_b32 s8, s{w}, 2
    v_add_u32 v21, s8, v21
    v_lshlrev_b32 v22, 9, v20
    v_lshl_add_u32 v22, v21, 4, v22
    s_lshl_b32 s10, s{x}, 13
    s_add_u32 s10, s10, {st1}
    s_add_u32 s11, s10, 4096
    v_mul_u32_u24 v23, 3072, v20
    v_and_b32 v24, 3, v{l}
    v_min_u32 v24, 2, v24
    v_lshl_add_u32 v23, v24, 10, v23
    v_bfe_u32 v24, v{l}, 2, 1
    v_lshl_add_u32 v23, v24, 9, v23
    v_lshl_add_u32 v23, v21, 4, v23
    s_lshl_b32 s8, s{x}, 4
    s_add_u32 s8, s8, s{s}
    s_mul_i32 s70, s8, 49152
    s_add_u32 s70, s70, {ea1}'''.format(l=vL, w=sW, x=sX, st1=ST1, s=sS, ea1=EA1))
    for i in range(1, 8):
        a('s_add_u32 s%d, s%d, 6144' % (70 + i, 70 + i - 1))
    a('''v_and_b32 v24, 7, v{l}
    v_lshlrev_b32 v24, 4, v24
    v_lshl_add_u32 v24, v21, 14, v24
    s_lshr_b32 s8, s{s}, 2
    s_lshl_b32 s8, s8, 3
    s_add_u32 s8, s8, s{x}
    s_lshl_b32 s12, s8, 9
    s_lshl_b32 s8, s{j}, 7
    s_add_u32 s12, s12, s8
    s_add_u32 s12, s12, {ea2}
    v_lshlrev_b32 v25, 4, v21
    s_lshl_b32 s13, s{x}, 9
    s_add_u32 s13, s13, {st2}'''.format(l=vL, s=sS, x=sX, j=sJ, ea2=EA2, st2=ST2))
    B = 136
    poll([ld(B + 4 * i, 3, 22, WS, 10 + i // 4, off=1024 * (i % 4), mod='sc1') for i in range(8)],
         [B + 4 * i + 2 for i in range(8)], 48)
    ts('st1')
    a('''v_max3_f32 v48, v{0}, v{1}, v{2}
    v_max3_f32 v49, v{3}, v{4}, v{5}
    v_max3_f32 v48, v{6}, v{7}, v48
    v_max_f32 v130, v48, v49
    v_mov_b32 v49, v130
    v_permlane32_swap_b32 v130, v49
    v_max_f32 v130, v130, v49
    v_subrev_f32 v48, {c127}, v130
    v_mov_b32 v131, 0'''.format(*[B + 4 * i for i in range(8)], c127=f32(127.0)))
    FL, FH = 56, 64
    for i in range(8):
        a('''v_sub_f32 v49, v{m}, v48
        v_max_f32 v49, 0, v49
        v_cvt_u32_f32 v49, v49
        v_lshlrev_b32 v{fl}, 7, v49
        v_lshlrev_b32 v{fh}, 23, v49
        v_fmac_f32 v131, v{fh}, v{l}'''.format(m=B + 4 * i, fl=FL + i, fh=FH + i, l=B + 4 * i + 1))
    a('''v_mov_b32 v49, v131
    v_permlane32_swap_b32 v131, v49
    v_add_f32 v131, v131, v49
    s_cmp_lg_u32 s{s}, 0
    s_cbranch_scc1 L_YRD2'''.format(s=sS))
    setexec(0x01010101, 0)
    st(130, 25, 13)
    setexec(0xffffffff, 0xffffffff)
    a.label('L_YRD2')
    poll([ld(B + 4 * i, 4, 23, WS, 70 + i, mod='sc1') for i in range(8)], [B + 4 * i + 3 for i in range(8)], 48)
    ts('ea1')
    for i in range(8):
        for k in range(6):
            a('v_dot2_f32_bf16 v%d, v%d, v%d, %s' % (72 + k, B + 4 * i + k // 2, (FH if k & 1 else FL) + i,
                                                     'v%d' % (72 + k) if i else '0'))
    a('''v_permlane32_swap_b32 v72, v74
    v_permlane32_swap_b32 v73, v75
    v_permlane32_swap_b32 v76, v77
    v_add_f32 v72, v72, v74
    v_add_f32 v73, v73, v75
    v_add_f32 v76, v76, v77
    v_cvt_pk_bf16_f32 v80, v72, v73
    v_mov_b32 v77, v76
    v_mov_b32 v81, v80
    v_mov_b32 v83, s{tag}
    v_permlane32_swap_b32 v76, v77
    v_permlane32_swap_b32 v80, v81
    v_cvt_pk_bf16_f32 v82, v76, v77'''.format(tag=sTAG))
    setexec(0xffffffff, 0)
    st(80, 24, 12)
    setexec(0xffffffff, 0xffffffff)
    ts('rdst')
    a('''v_lshlrev_b32 v20, 9, v{g}
    s_lshl_b32 s8, s{h}, 4
    s_add_u32 s10, s8, {st2}
    v_lshrrev_b32 v21, 2, v{n}
    v_lshl_add_u32 v21, v21, 4, v20
    s_lshl_b32 s8, s{h}, 2
    s_add_u32 s8, s8, s{j}
    s_lshl_b32 s11, s8, 12
    s_lshl_b32 s9, s{w}, 6
    s_add_u32 s11, s11, s9
    s_add_u32 s11, s11, {ea2}
    s_lshl_b32 s12, s8, 9
    s_add_u32 s12, s12, {eb}'''.format(g=vG, h=sH, st2=ST2, n=vN, j=sJ, w=sW, ea2=EA2, eb=EB))
    poll([ld(72, 3, 20, WS, 10, mod='sc1'), ld(76, 3, 20, WS, 10, off=2048, mod='sc1')], [74, 78], 48)
    a('v_max_f32 v48, v72, v76')
    xrow('v_max_f32', 48, 49)
    a('v_subrev_f32 v48, %s, v48' % f32(127.0))
    for i, (m, A) in enumerate(((72, 56), (76, 58))):
        a('''v_sub_f32 v49, v{m}, v48
        v_max_f32 v49, 0, v49
        v_cvt_u32_f32 v49, v49
        v_lshlrev_b32 v50, 23, v49
        v_mul_f32 v{l}, v50, v{l}
        v_lshl_or_b32 v50, v49, 7, v50
        v_and_b32 v{A}, v50, v18
        v_and_b32 v{A1}, v50, v19'''.format(m=m, l=m + 1, A=A, A1=A + 1))
    a('v_add_f32 v60, v73, v77')
    xrow('v_add_f32', 60, 49)
    a('v_rcp_f32 v60, v60')
    wr = slab128_write(88, 4096, 23)
    a('''v_lshrrev_b32 v25, 1, v{l}
    v_lshlrev_b32 v25, 4, v25
    v_and_b32 v24, 1, v{l}
    v_mul_u32_u24 v24, 528, v24
    v_add_u32 v24, v24, v25'''.format(l=vL))
    poll([ld(72, 4, 21, WS, 11, mod='sc1'), ld(76, 4, 21, WS, 11, off=2048, mod='sc1')], [75, 79], 48)
    ts('ea2')
    for d in (72, 76):
        a('v_mov_b32_dpp v%d, v%d %s' % (d, d + 2, dpp('row_newbcast:0', bm=0x8)))
        a('v_mov_b32_dpp v%d, v%d %s' % (d + 1, d + 2, dpp('row_newbcast:4', bm=0x8)))
    gs(84, [72, 76], [56, 58])
    a('v_mul_f32 v84, v84, v60\nv_cvt_pk_bf16_f32 v84, v84, v84')
    diag([((84, 'row_newbcast:%d' % (4 * t)), [CW + 4 * t], None) for t in range(4)], [88])
    wr()
    a('s_waitcnt lgkmcnt(0)\ns_barrier\ns_cmp_lg_u32 s%d, 7\ns_cbranch_scc1 L_YO' % sW)
    slab_final(4, 24, 4096, 1056, 136, 130, 2)
    setexec(0x55555555, 0x55555555)
    st(130, 25, 12)
    setexec(0xffffffff, 0xffffffff)
    ts('cst')
    a.label('L_YO')
    a('s_cmp_ge_u32 s%d, 9\ns_cbranch_scc1 L_YR' % sS)
    tworow_addr()
    a('''v_lshlrev_b32 v28, 9, v{g}
    v_lshl_add_u32 v28, v{n}, 4, v28
    s_lshl_b32 s8, s{x}, 2
    s_lshr_b32 s9, s{w}, 1
    s_add_u32 s8, s8, s9
    s_lshl_b32 s10, s8, 11
    s_and_b32 s9, s{w}, 1
    s_lshl_b32 s9, s9, 8
    s_add_u32 s10, s10, s9
    s_add_u32 s10, s10, {eb}
    s_mul_i32 s11, s{x}, 2304
    s_lshl_b32 s8, s{s}, 8
    s_add_u32 s11, s11, s8
    s_add_u32 s11, s11, {ec}'''.format(g=vG, n=vN, x=sX, w=sW, eb=EB, s=sS, ec=EC))
    poll([ld(72, 3, 28, WS, 10, mod='sc1')], [74], 48)
    ts('eb')
    gs(84, [72])
    a('v_cvt_pk_bf16_f32 v84, v84, v84')
    two_row_src(84, 85, 86)
    diag([((85 + k // 4, qp(k % 4)), [OW + 4 * k], None) for k in range(8)], [88])
    tworow_out(88, 12288, 11, 6)
    ts('ost')
    finish()
    a.label('L_YR')
    a('''s_sub_u32 s8, s{s}, 9
    s_lshl_b32 s8, s8, 3
    s_add_u32 s69, s8, s{x}
    s_cmp_ge_u32 s69, 18
    s_cbranch_scc1 L_FIN
    s_cmp_lg_u32 s{w}, 0
    s_cbranch_scc1 L_FIN'''.format(s=sS, x=sX, w=sW))
    srd(R1, pOUT, 1152)
    a('''v_and_b32 v20, 7, v{n}
    v_lshl_add_u32 v21, v20, 2, v{g}
    v_lshlrev_b32 v21, 1, v21
    s_lshl_b32 s70, s69, 6
    v_lshlrev_b32 v20, 4, v20
    v_lshrrev_b32 v22, 3, v{n}
    v_lshl_add_u32 v22, v{g}, 1, v22
    v_mul_u32_u24 v23, 2304, v22
    v_add_u32 v23, v23, v20
    v_lshl_add_u32 v22, v22, 8, v20
    s_lshl_b32 s8, s69, 7
    s_add_u32 s10, s8, {gg}
    s_add_u32 s11, s10, {gb}
    s_add_u32 s12, s8, {ec}
    s_lshr_b32 s8, s69, 1
    s_mul_i32 s71, s8, 18432
    s_and_b32 s8, s69, 1
    s_lshl_b32 s8, s8, 7
    s_add_u32 s71, s71, s8
    s_add_u32 s71, s71, {ed}
    s_add_u32 s72, s71, 4096
    s_add_u32 s73, s72, 4096
    s_add_u32 s74, s73, 4096
    s_add_u32 s75, s74, 4096
    v_and_b32 v24, 1, v{g}
    v_lshlrev_b32 v24, 4, v24
    v_sub_u32 v24, 16, v24'''.format(n=vN, g=vG, gg=GG, gb=432 * 16, ec=EC, ed=ED))
    a(ld(30, 'h', 21, R4, 70))
    poll([ld(72, 3, 20, WS, 10, mod='sc1'), ld(76, 3, 20, WS, 11, mod='sc1'), ld(80, 3, 23, WS, 12, mod='sc1')],
         [74, 78, 82], 48)
    gs(84, [80])
    a('v_cmp_lt_u32 vcc, 1, v%d' % vG)
    extract(31, 72, 24)
    extract(32, 76, 24)
    a('v_lshlrev_b32 v30, 16, v30')
    a('v_add_f32_dpp v84, v84, v84 ' + dpp('row_ror:8'))
    a('v_fmac_f32 v30, v31, v84')
    ts('rx2')
    poll([ld(136 + 4 * i, 3, 22, WS, 71 + i // 2, off=2048 * (i % 2), mod='sc1') for i in range(9)],
         [136 + 4 * i + 2 for i in range(9)], 48)
    ts('ed')
    gs(84, [136 + 4 * i for i in range(9)])
    a('v_add_f32_dpp v84, v84, v84 ' + dpp('row_ror:8'))
    a('v_fmac_f32 v30, v32, v84\nv_cvt_pk_bf16_f32 v30, v30, v30')
    setexec(0x00ff00ff, 0x00ff00ff)
    a('buffer_store_short v30, v21, %s, s70 offen' % sr(R1, 4))
    a('s_cmp_lg_u32 s69, 0\ns_cbranch_scc1 L_FIN')
    setexec(1, 0)
    a('v_mov_b32 v20, 0\nv_mov_b32 v21, s%d\nbuffer_store_dword v21, v20, %s, 0 offen sc1' % (sTAG, sr(WS, 4)))
    a.label('L_FIN')
    ts('fin')
    finish()


class Lds:
    def __init__(self):
        self.q = []

    def rd(self, text, key):
        if len(self.q) >= 15:
            self.need(self.q[len(self.q) - 15])
        a(text)
        self.q.append(key)

    def need(self, key):
        if key in self.q:
            i = len(self.q) - 1 - self.q[::-1].index(key)
            a('s_waitcnt lgkmcnt(%d)' % (len(self.q) - 1 - i))
            self.q = self.q[i + 1:]


def fsw(i):
    return ((i & 3) << 2) | (i >> 2)


def role_x():
    a.label('L_X')
    KVB = 32768
    KF, RING, SA = 32, 96, 192
    srd(R2, pKV, 16777216)
    srd(R1, pMOD, 576 * 6912)
    srd(R4, pC, 1152)
    a('''s_lshl_b32 s8, s{x}, 4
    s_add_u32 s8, s8, s{s}
    s_lshl_b32 s66, s8, 17
    s_lshl_b32 s9, s{w}, 14
    s_add_u32 s66, s66, s9
    s_add_u32 s67, s9, {kvb}
    v_lshlrev_b32 v20, 4, v{l}
    s_cmp_ge_u32 s{s}, 9
    s_cbranch_scc1 L_XD
    s_cmp_lg_u32 s{w}, 0
    s_cbranch_scc1 L_XD'''.format(x=sX, s=sS, w=sW, kvb=KVB, l=vL))
    a('''s_mul_i32 s8, s{x}, 144
    v_lshl_add_u32 v21, v{n}, 2, v{g}
    v_lshlrev_b32 v21, 1, v21
    v_and_b32 v22, 1, v{n}
    v_lshl_add_u32 v22, v22, 2, v{g}
    v_lshlrev_b32 v22, 1, v22
    v_mul_u32_u24 v23, 6912, v{g}
    v_lshl_add_u32 v23, v{n}, 4, v23
    s_mul_i32 s9, s{x}, {ksz}
    s_lshl_b32 s10, s{s}, 8
    s_add_u32 s9, s9, s10'''.format(x=sX, n=vN, g=vG, ksz=72 * 6912, s=sS))
    a(ld(24, 'h', 21, R4, 8))
    a(ld(25, 'h', 22, R4, 8, off=128))
    for t in range(18):
        a(ld(RING + 4 * t, 4, 23, R1, 9, mod='nt'))
        if t < 17:
            a('s_add_u32 s9, s9, 27648')
    gettag()
    ts('start')
    a('''s_mul_i32 s9, s{x}, 4608
    s_lshl_b32 s10, s{s}, 9
    s_add_u32 s9, s9, s10
    s_add_u32 s9, s9, {e1}
    v_lshlrev_b32 v21, 5, v{n}
    v_lshl_add_u32 v21, v{g}, 4, v21
    v_mov_b32 v30, s{tag}
    v_mov_b32 v31, s{tag}
    s_waitcnt vmcnt(18)'''.format(x=sX, s=sS, e1=E1, n=vN, g=vG, tag=sTAG))
    silu_pair(24, 26)
    silu_pair(25, 27)
    diag([((24 + t // 16, 'row_newbcast:%d' % (t % 16)), [RING + 4 * t], 17 - t) for t in range(18)], [SA])
    a('v_cvt_pk_bf16_f32 v28, v%d, v%d\nv_cvt_pk_bf16_f32 v29, v%d, v%d' % (SA, SA + 1, SA + 2, SA + 3))
    setexec(0xffffffff, 0)
    st(28, 21, 9)
    setexec(0xffffffff, 0xffffffff)
    a('s_sub_u32 s%d, s%d, 1' % (sTAG, sTAG))
    ts('mst')
    a.label('L_XD')
    for i in range(16):
        if i % 4 == 0:
            a('s_mov_b32 m0, s67')
        a('v_xor_b32 v%d, %d, v20' % (21 + i % 4, fsw(i) * 16))
        a('buffer_load_dwordx4 v%d, %s, s66 offen offset:%d nt lds' % (21 + i % 4, sr(R2, 4), 1024 * (i % 4)))
        if i % 4 == 3 and i < 15:
            a('s_add_u32 s66, s66, 4096\ns_add_u32 s67, s67, 4096')
    gettag()
    ts('dma')
    a('''v_bfe_u32 v21, v{l}, 1, 4
    s_and_b32 s8, s{w}, 3
    v_xor_b32 v21, s8, v21
    v_lshlrev_b32 v21, 4, v21
    v_and_b32 v22, 1, v{l}
    v_lshl_add_u32 v21, v22, 3, v21
    v_lshrrev_b32 v22, 5, v{l}
    v_lshl_add_u32 v21, v22, 13, v21
    s_lshl_b32 s8, s{w}, 10
    v_add_u32 v24, s8, v21
    v_xor_b32 v25, 64, v24
    v_xor_b32 v26, 128, v24
    v_xor_b32 v27, 192, v24
    v_and_b32 v21, 3, v{n}
    v_xor_b32 v21, v21, v{g}
    v_lshlrev_b32 v21, 2, v21
    v_lshrrev_b32 v22, 2, v{n}
    v_or_b32 v21, v21, v22
    v_lshlrev_b32 v21, 4, v21
    v_lshl_add_u32 v200, v{n}, 8, v21
    v_lshl_add_u32 v28, v{n}, 10, v21
    s_lshl_b32 s8, s{w}, 14
    s_add_u32 s8, s8, {kvb}
    v_add_u32 v28, s8, v28
    s_lshl_b32 s10, s{w}, 13
    s_add_u32 s10, s10, {e2}
    s_add_u32 s11, s10, 4096'''.format(l=vL, w=sW, n=vN, g=vG, kvb=KVB, e2=E2))
    for u in range(1, 4):
        a('v_xor_b32 v%d, %d, v28\nv_xor_b32 v%d, %d, v200' % (28 + u, 16 * u, 200 + u, 16 * u))
    a('s_waitcnt vmcnt(0)')
    ts('kv')
    for t in range(16):
        a('ds_read_b128 %s, v%d offset:%d' % (vr(KF + 4 * t, 4), 28 + t % 4, 256 * (t // 4)))
        if t == 7:
            a('s_waitcnt lgkmcnt(4)')
    poll([ld(RING + 4 * i, 3, 20, WS, 10 + i // 4, off=1024 * (i % 4), mod='sc1') for i in range(8)],
         [RING + 4 * i + 2 for i in range(8)], 21)
    ts('e2')
    a('s_waitcnt lgkmcnt(0)')
    for i in range(8):
        k, e = i // 2, i % 2
        a('ds_write_b64 v%d, %s offset:%d' % (24 + k, vr(RING + 4 * i, 2), 16384 * e + 256 * k))
    a('s_waitcnt lgkmcnt(0)\ns_barrier')
    L = Lds()

    def qread(t):
        for ht in range(2):
            L.rd('ds_read_b128 %s, v%d offset:%d' % (vr(RING + 8 * (t % 12) + 4 * ht, 4), 200 + t % 4,
                                                     8192 * (t // 4) + 4096 * ht), ('q', t))
    for t in range(4):
        qread(t)
    a('''v_lshrrev_b32 v21, 5, v{l}
    v_lshl_add_u32 v21, v21, 4, v{n}
    v_lshlrev_b32 v21, 5, v21
    s_lshl_b32 s8, s{w}, 2
    v_add_u32 v21, s8, v21
    v_lshlrev_b32 v22, 5, v{n}
    v_lshrrev_b32 v23, 1, v{g}
    v_lshlrev_b32 v23, 9, v23
    v_lshl_add_u32 v23, v{n}, 4, v23
    v_and_b32 v24, 1, v{g}
    v_lshl_add_u32 v23, v24, 3, v23
    s_lshl_b32 s8, s{w}, 10
    v_add_u32 v23, s8, v23'''.format(l=vL, n=vN, w=sW, g=vG))
    L.need(('q', 3))
    a('s_barrier')
    for t in range(4, 10):
        qread(t)
    for t in range(16):
        L.need(('q', t))
        for ht in range(2):
            a('v_mfma_f32_16x16x32_bf16 %s, %s, %s, %s' % (vr(SA + 4 * ht, 4), vr(KF + 4 * t, 4),
                                                          vr(RING + 8 * (t % 12) + 4 * ht, 4), vr(SA + 4 * ht, 4) if t else '0'))
        if t + 10 < 16:
            qread(t + 10)
        if t == 12:
            a('''v_bfe_u32 v204, v{l}, 2, 2
            v_lshrrev_b32 v205, 5, v{l}
            v_lshl_add_u32 v206, v205, 3, v204
            v_lshlrev_b32 v206, 10, v206
            v_lshlrev_b32 v204, 2, v204
            v_lshl_or_b32 v204, v205, 1, v204
            v_bfe_u32 v205, v{l}, 4, 1
            v_bfe_u32 v207, v{l}, 1, 1
            v_lshl_or_b32 v205, v205, 1, v207
            v_xor_b32 v204, v204, v205
            s_and_b32 s8, s{w}, 1
            s_lshl_b32 s8, s8, 3
            v_xor_b32 v204, s8, v204
            v_lshl_add_u32 v206, v204, 4, v206
            v_and_b32 v205, 1, v{l}
            v_lshl_add_u32 v206, v205, 3, v206
            s_lshr_b32 s8, s{w}, 1
            s_lshl_b32 s8, s8, 8
            s_add_u32 s8, s8, {kvb}
            v_add_u32 v24, s8, v206
            v_xor_b32 v25, 16, v24
            v_add_u32 v25, 4096, v25
            v_xor_b32 v26, 64, v24
            v_xor_b32 v27, 64, v25
            v_add_u32 v28, 0x10000, v24
            v_add_u32 v29, 0x10000, v25
            v_add_u32 v30, 0x10000, v26
            v_add_u32 v31, 0x10000, v27'''.format(l=vL, w=sW, kvb=KVB))
    ts('s')
    a('''v_max3_f32 v204, v{0}, v{1}, v{2}
    v_max3_f32 v205, v{4}, v{5}, v{6}
    v_max_f32 v204, v204, v{3}
    v_max_f32 v205, v205, v{7}
    v_permlane32_swap_b32 v204, v205
    v_max_f32 v204, v204, v205
    v_mov_b32 v205, v204
    v_permlane16_swap_b32 v204, v205
    v_max_f32 v204, v204, v205
    v_ceil_f32 v204, v204
    ds_write_b32 v21, v204
    s_waitcnt lgkmcnt(0)
    s_barrier
    ds_read_b128 v[208:211], v22
    ds_read_b128 v[212:215], v22 offset:16
    ds_read_b128 v[216:219], v22 offset:512
    ds_read_b128 v[220:223], v22 offset:528'''.format(*[SA + i for i in range(8)]))
    L = Lds()
    L.q = ['m0', 'm0', 'm1', 'm1']
    VF, PF, AC, GR = 32, 96, 128, 160

    def vread(tp, u):
        for e in range(2):
            L.rd('ds_read_b64_tr_b16 %s, v%d offset:%d' % (vr(VF + 32 * tp + 4 * u + 2 * e, 2), 24 + 2 * tp + e + 4 * (u // 4),
                                                           16384 * (u % 4)), ('v', tp, u))
    for u in range(4):
        vread(0, u)
    for ht in range(2):
        L.need('m%d' % ht)
        b = 208 + 8 * ht
        a('''v_max3_f32 v{b}, v{b}, v{1}, v{2}
        v_max3_f32 v{3}, v{3}, v{4}, v{5}
        v_max3_f32 v{b}, v{b}, v{6}, v{7}
        v_max_f32 v{b}, v{b}, v{3}'''.format(*[b + i for i in range(8)], b=b))
        for r in range(4):
            a('v_sub_f32 v%d, v%d, v%d' % (SA + 4 * ht + r, SA + 4 * ht + r, b))
        for r in range(4):
            a('v_exp_f32 v%d, v%d' % (SA + 4 * ht + r, SA + 4 * ht + r))
        a('v_cvt_pk_bf16_f32 v%d, v%d, v%d\nv_cvt_pk_bf16_f32 v%d, v%d, v%d'
          % (204 + 2 * ht, SA + 4 * ht, SA + 4 * ht + 1, 205 + 2 * ht, SA + 4 * ht + 2, SA + 4 * ht + 3))
        L.rd('ds_write_b64 v23, %s offset:%d' % (vr(204 + 2 * ht, 2), 8192 + 256 * ht), 'pw')
    for i in range(6):
        a('v_mov_b32 v%d, s%d' % (GR + 4 * i + 3, sTAG))
    a('v_mov_b32 v%d, 0\nv_mov_b32 v%d, 0' % (GR + 10, GR + 22))
    a('''s_lshl_b32 s8, s{x}, 4
    s_lshl_b32 s9, s{w}, 1
    s_add_u32 s8, s8, s9
    s_lshl_b32 s8, s8, 4
    s_add_u32 s8, s8, s{s}
    s_mul_i32 s10, s8, 3072
    s_add_u32 s10, s10, {ea1}
    s_add_u32 s11, s10, 49152'''.format(x=sX, w=sW, s=sS, ea1=EA1))
    L.need('pw')
    a('s_barrier')
    ts('p')
    for u in range(8):
        L.rd('ds_read_b128 %s, v20 offset:%d' % (vr(PF + 4 * u, 4), 8192 + 1024 * u), ('p', u))
    for u in range(4, 7):
        vread(0, u)
    a('s_cmp_lg_u32 s%d, 7\ns_cbranch_scc1 L_XPV' % sW)
    a('''v_and_b32 v21, 31, v{l}
    v_lshlrev_b32 v22, 5, v21
    s_waitcnt lgkmcnt(0)
    ds_read_b128 v[208:211], v22
    ds_read_b128 v[212:215], v22 offset:16
    v_mov_b32 v204, 0x3f803f80
    v_mov_b32 v217, 0
    v_mov_b32 v205, 0'''.format(l=vL))
    for i in range(16):
        a('v_dot2_f32_bf16 v217, v%d, v204, v217\nv_dot2_f32_bf16 v205, v%d, v204, v205' % (PF + 2 * i, PF + 2 * i + 1))
    a('''v_add_f32 v217, v217, v205
    v_mov_b32 v205, v217
    v_mov_b32 v218, s{tag}
    v_mov_b32 v219, s{tag}
    v_permlane32_swap_b32 v217, v205
    v_add_f32 v217, v217, v205
    s_waitcnt lgkmcnt(0)
    v_max3_f32 v208, v208, v209, v210
    v_max3_f32 v211, v211, v212, v213
    v_max3_f32 v208, v208, v214, v215
    v_max_f32 v216, v208, v211
    s_lshl_b32 s8, s{x}, 4
    s_add_u32 s8, s8, s{s}
    s_lshl_b32 s8, s8, 9
    s_add_u32 s8, s8, {st1}'''.format(tag=sTAG, x=sX, s=sS, st1=ST1))
    setexec(0xffffffff, 0)
    st(216, 20, 8)
    setexec(0xffffffff, 0xffffffff)
    a.label('L_XPV')
    pend = [(0, 7)] + [(1, u) for u in range(8)]

    def pack(tp):
        c, g = AC + 16 * tp, GR + 12 * tp
        for dst, s0 in ((0, 0), (1, 2), (2, 12), (4, 4), (5, 6), (6, 14), (8, 8), (9, 10)):
            a('v_cvt_pk_bf16_f32 v%d, v%d, v%d' % (g + dst, c + s0, c + s0 + 1))
        for k3 in range(3):
            st(g + 4 * k3, 20, 10 + tp, off=1024 * k3)
    for tp in range(2):
        for u in range(8):
            L.need(('p', u))
            L.need(('v', tp, u))
            c = AC + 16 * tp
            a('v_mfma_f32_32x32x16_bf16 %s, %s, %s, %s' % (vr(c, 16), vr(VF + 32 * tp + 4 * u, 4), vr(PF + 4 * u, 4),
                                                          vr(c, 16) if u else '0'))
            if pend:
                vread(*pend.pop(0))
            if tp == 0 and u == 0 and pend:
                vread(*pend.pop(0))
            if tp == 1 and u == 1:
                pack(0)
    pack(1)
    ts('pv')
    a('s_cmp_ge_u32 s%d, 9\ns_cbranch_scc1 L_XG' % sS)
    GW, UW, DW, DW2 = 32, 68, 104, 184
    srd(R1, pGATE, 576 * 9216)
    srd(R2, pUP, 576 * 9216)
    srd(R3, pDOWN, 4608 * 1152)
    srd(R4, pX, 1152)
    tworow_voff(28, 9216, 30)
    tworow_voff(29, 9216, 30, rowmul=4)
    a('''s_mul_i32 s66, s{x}, 9
    s_add_u32 s66, s66, s{s}
    s_mul_i32 s8, s{w}, {wsz}
    s_lshl_b32 s9, s66, 7
    s_add_u32 s8, s8, s9'''.format(x=sX, s=sS, w=sW, wsz=72 * 9216))
    for k in range(9):
        a(ld(GW + 4 * k, 4, 28 if k < 8 else 29, R1, 8, mod='nt'))
        a(ld(UW + 4 * k, 4, 28 if k < 8 else 29, R2, 8, mod='nt'))
        if k < 8:
            a('s_add_u32 s8, s8, %d' % (4 * 9216 if k < 7 else 36 * 9216))
    tworow_voff(28, 1152, 30)
    a('''s_mul_i32 s8, s66, {usz}
    s_lshl_b32 s9, s{w}, 7
    s_add_u32 s9, s8, s9'''.format(usz=64 * 1152, w=sW))
    for k in range(8):
        a(ld(DW + 4 * k, 4, 28, R3, 9, mod='nt'))
        if k < 7:
            a('s_add_u32 s9, s9, 4608')
    a('s_cmp_lg_u32 s%d, 0\ns_cbranch_scc1 L_XF1' % sW)
    for k in range(8):
        a(ld(DW2 + 4 * k, 4, 28, R3, 8, off=1024, mod='nt'))
        if k < 7:
            a('s_add_u32 s8, s8, 4608')
    a.label('L_XF1')
    a('''v_lshl_add_u32 v21, v{n}, 2, v{g}
    v_lshlrev_b32 v21, 1, v21
    v_lshrrev_b32 v22, 3, v{n}
    v_lshl_add_u32 v23, v22, 2, v{g}
    v_lshlrev_b32 v23, 1, v23
    s_mul_i32 s8, s{w}, 144
    v_lshlrev_b32 v24, 4, v{n}
    v_lshlrev_b32 v25, 4, v22
    s_mul_i32 s9, s{w}, 288
    s_add_u32 s10, s9, {gg}
    s_add_u32 s11, s10, 4608
    s_add_u32 s12, s9, {ec}
    s_add_u32 s13, s12, 9216
    v_and_b32 v26, 1, v{g}
    v_lshlrev_b32 v26, 4, v26
    v_sub_u32 v26, 16, v26
    v_mul_u32_u24 v27, 2304, v{g}
    v_add_u32 v27, v27, v24
    v_and_b32 v29, 1, v{n}
    v_lshl_add_u32 v29, v{g}, 1, v29
    v_mul_u32_u24 v29, 2304, v29
    v_add_u32 v29, v29, v25'''.format(n=vN, g=vG, w=sW, gg=GG, ec=EC))
    a(ld(160, 'h', 21, R4, 8))
    a(ld(161, 'h', 23, R4, 8, off=128))
    poll([ld(136, 3, 24, WS, 10, mod='sc1'), ld(140, 3, 25, WS, 10, off=256, mod='sc1'),
          ld(144, 3, 24, WS, 10, off=2304, mod='sc1'), ld(148, 3, 25, WS, 10, off=2560, mod='sc1'),
          ld(152, 3, 24, WS, 11, mod='sc1'), ld(156, 3, 25, WS, 11, off=256, mod='sc1')],
         [138 + 4 * i for i in range(6)], 30)
    ts('g')
    a('v_cmp_lt_u32 vcc, 1, v%d' % vG)
    for i in range(6):
        extract(162 + i, 136 + 4 * i, 26)
    a('''v_lshlrev_b32 v160, 16, v160
    v_lshlrev_b32 v161, 16, v161
    v_add_f32 v166, 1.0, v166
    v_add_f32 v167, 1.0, v167
    v_and_b32 v21, 32, v{l}
    s_lshl_b32 s8, s{w}, 2
    v_add_u32 v21, s8, v21
    v_and_b32 v30, 1, v{g}
    v_lshl_add_u32 v30, v{n}, 1, v30
    v_mul_u32_u24 v22, 144, v30
    v_lshlrev_b32 v24, 4, v30
    v_lshrrev_b32 v30, 1, v{g}
    v_mul_u32_u24 v30, 2304, v30
    v_add3_u32 v22, v22, v30, s8
    v_mul_u32_u24 v23, 144, v{n}
    v_lshl_add_u32 v23, v{g}, 5, v23
    v_mov_b32 v25, 0
    v_mov_b32 v178, s{tag}
    v_mov_b32 v179, s{tag}
    s_mul_i32 s14, s{w}, 18432
    s_lshl_b32 s8, s66, 8
    s_add_u32 s8, s8, {ed}
    s_add_u32 s14, s14, s8
    s_add_u32 s15, s8, {b8}'''.format(l=vL, w=sW, g=vG, n=vN, tag=sTAG, ed=ED, b8=8 * 18432))
    poll([ld(136, 3, 27, WS, 12, mod='sc1'), ld(140, 3, 27, WS, 13, mod='sc1'), ld(144, 3, 29, WS, 12, off=256, mod='sc1')],
         [138, 142, 146], 30)
    ts('ec')
    gs(152, [144])
    gs(148, [136, 140])
    a('v_add_f32_dpp v152, v152, v152 ' + dpp('quad_perm:[1,0,3,2]'))
    a('''v_fmac_f32 v161, v163, v152
    v_fmac_f32 v160, v162, v148
    v_mul_f32 v169, 0x3e000000, v161
    v_add_f32 v168, v160, v169
    v_mul_f32 v169, v169, v161
    v_fmac_f32 v169, v160, v160
    v_permlane32_swap_b32 v168, v169
    v_add_f32 v168, v168, v169''')
    inrow('v_add_f32', [168])
    a('''v_mov_b32 v169, v168
    v_permlane16_swap_b32 v168, v169
    v_add_f32 v168, v168, v169
    ds_write_b32 v21, v168 offset:16384
    s_waitcnt lgkmcnt(0)
    s_barrier
    ds_read_b128 v[136:139], v25 offset:16384
    ds_read_b128 v[140:143], v25 offset:16400
    ds_read_b128 v[144:147], v25 offset:16416
    ds_read_b128 v[148:151], v25 offset:16432
    s_waitcnt lgkmcnt(2)
    v_pk_add_f32 v[136:137], v[136:137], v[138:139]
    v_pk_add_f32 v[140:141], v[140:141], v[142:143]
    v_pk_add_f32 v[136:137], v[136:137], v[140:141]
    v_add_f32 v136, v136, v137
    s_waitcnt lgkmcnt(0)
    v_pk_add_f32 v[144:145], v[144:145], v[146:147]
    v_pk_add_f32 v[148:149], v[148:149], v[150:151]
    v_pk_add_f32 v[144:145], v[144:145], v[148:149]
    v_add_f32 v144, v144, v145
    v_mul_f32 v136, {inv}, v136
    v_mul_f32 v144, {inv}, v144
    v_fma_f32 v144, -v136, v136, v144
    v_max_f32 v144, 0, v144
    v_add_f32 v144, {eps}, v144
    v_rsq_f32 v144, v144
    v_sub_f32 v160, v160, v136
    v_sub_f32 v161, v161, v136
    v_mul_f32 v160, v160, v166
    v_mul_f32 v161, v161, v167
    v_fma_f32 v160, v160, v144, v164
    v_fma_f32 v161, v161, v144, v165
    v_cvt_pk_bf16_f32 v160, v160, v160
    v_cvt_pk_bf16_f32 v161, v161, v161'''.format(inv=f32(1 / 576), eps=f32(1e-5)))
    two_row_src(160, 162, 163)
    order = [8] + list(range(8))
    diag([((161, None) if k == 8 else (162 + k // 4, qp(k % 4)), [GW + 4 * k, UW + 4 * k], None) for k in order], [168, 172])
    for r in range(4):
        a('v_permlane32_swap_b32 v%d, v%d' % (168 + r, 172 + r))
    for r in range(4):
        a('v_add_f32_dpp v%d, v%d, v%d %s' % (168 + r, 172 + r, 168 + r, dpp('row_ror:8')))
    setexec(0x00ff00ff, 0x00ff00ff)
    for r in range(4):
        a('ds_write_b32 v22, v%d offset:%d' % (168 + r, 17408 + 32 * r))
    setexec(0xffffffff, 0xffffffff)
    a('''s_waitcnt lgkmcnt(0)
    s_barrier
    ds_read_b128 v[136:139], v23 offset:17408
    ds_read_b128 v[140:143], v23 offset:17424
    ds_read_b128 v[144:147], v23 offset:{u0}
    ds_read_b128 v[148:151], v23 offset:{u1}
    s_waitcnt lgkmcnt(2)
    v_pk_add_f32 v[136:137], v[136:137], v[138:139]
    v_pk_add_f32 v[140:141], v[140:141], v[142:143]
    v_pk_add_f32 v[136:137], v[136:137], v[140:141]
    v_add_f32 v136, v136, v137
    v_mul_f32 v137, v136, v136
    v_mul_f32 v137, {k2}, v137
    v_add_f32 v137, {k1}, v137
    s_waitcnt lgkmcnt(0)'''.format(u0=17408 + 2304, u1=17424 + 2304, k1=f32(-2 * 0.7978845608028654 * LOG2E),
                                   k2=f32(-2 * 0.7978845608028654 * LOG2E * 0.044715)))
    a('''v_mul_f32 v137, v137, v136
    v_exp_f32 v137, v137
    v_pk_add_f32 v[144:145], v[144:145], v[146:147]
    v_pk_add_f32 v[148:149], v[148:149], v[150:151]
    v_add_f32 v137, 1.0, v137
    v_rcp_f32 v137, v137
    v_pk_add_f32 v[144:145], v[144:145], v[148:149]
    v_add_f32 v144, v144, v145
    v_mul_f32 v136, v136, v144
    v_mul_f32 v136, v136, v137
    v_cvt_pk_bf16_f32 v160, v136, v136''')
    two_row_src(160, 162, 163)
    ts('act')

    def down_out(acc, soff):
        a('''v_permlane32_swap_b32 v{0}, v{2}
        v_permlane32_swap_b32 v{1}, v{3}'''.format(acc, acc + 1, acc + 2, acc + 3))
        a('v_add_f32_dpp v%d, v%d, v%d %s' % (acc, acc + 2, acc, dpp('row_ror:8')))
        a('v_add_f32_dpp v%d, v%d, v%d %s' % (acc + 1, acc + 3, acc + 1, dpp('row_ror:8')))
        a('''v_cvt_pk_bf16_f32 v176, v{0}, v{1}
        v_mov_b32 v177, v176
        v_permlane32_swap_b32 v176, v177'''.format(acc, acc + 1))
        setexec(0x00ff00ff, 0)
        st(176, 24, soff)
        setexec(0xffffffff, 0xffffffff)
    a('s_cmp_eq_u32 s%d, 0\ns_cbranch_scc1 L_XF2' % sW)
    diag([((162 + k // 4, qp(k % 4)), [DW + 4 * k], None) for k in range(8)], [168])
    down_out(168, 14)
    ts('fin')
    finish()
    a.label('L_XF2')
    diag([((162 + k // 4, qp(k % 4)), [DW + 4 * k, DW2 + 4 * k], None) for k in range(8)], [168, 172])
    down_out(168, 14)
    down_out(172, 15)
    ts('fin')
    finish()
    a.label('L_XG')
    a('''s_sub_u32 s8, s{s}, 9
    s_lshl_b32 s8, s8, 3
    s_add_u32 s66, s8, s{x}
    s_cmp_ge_u32 s66, 36
    s_cbranch_scc1 L_FIN2'''.format(s=sS, x=sX))
    tworow_voff(28, 6912, 30)
    tworow_voff(29, 6912, 30, rowmul=4)
    a('''v_lshl_add_u32 v21, v{n}, 2, v{g}
    v_lshlrev_b32 v21, 1, v21
    v_lshrrev_b32 v22, 3, v{n}
    v_lshl_add_u32 v23, v22, 2, v{g}
    v_lshlrev_b32 v23, 1, v23
    s_mul_i32 s10, s{w}, 144
    s_mul_i32 s8, s{w}, {wsz}
    s_lshl_b32 s9, s66, 7
    s_add_u32 s8, s8, s9
    s_add_u32 s8, s8, 2304
    s_lshl_b32 s11, s66, 8
    s_add_u32 s11, s11, {gg}'''.format(n=vN, g=vG, w=sW, wsz=72 * 6912, gg=GG))
    a(ld(160, 'h', 21, R4, 10))
    a(ld(161, 'h', 23, R4, 10, off=128))
    for k in [8] + list(range(8)):
        if k == 8:
            a('s_add_u32 s9, s8, %d' % (64 * 6912))
            a(ld(GW + 4 * k, 4, 29, R1, 9, mod='nt'))
        else:
            a(ld(GW + 4 * k, 4, 28, R1, 8, mod='nt'))
            if k < 7:
                a('s_add_u32 s8, s8, %d' % (4 * 6912))
    tworow_addr()
    a('s_waitcnt vmcnt(9)')
    silu_pair(160, 164)
    silu_pair(161, 165)
    two_row_src(160, 162, 163)
    diag([((161, None) if k == 8 else (162 + k // 4, qp(k % 4)), [GW + 4 * k], 8 - i) for i, k in enumerate(order)], [168])
    tworow_out(168, 16384, 11, 0)
    a.label('L_FIN2')
    ts('fin')
    finish()


prologue()
role_x()
role_y()
a.label('L_END')
body = a.text()

ref = open('cdna_kernels/%s.s.ref' % NAME).read()
head, rest = ref.split(NAME + '_kernel:\n', 1)
tail = rest[rest.index('s_endpgm'):]
head = head.replace('; @launch grid=(3,1,1) block=(256,1,1) lds=0', '; @launch grid=(256,1,1) block=(512,1,1) lds=163840')
out = head + NAME + '_kernel:\n' + body + tail
path = sys.argv[1] if len(sys.argv) > 1 else 'cdna_kernels/%s.s' % NAME
open(path, 'w').write(out)
if DIAG:
    open(path + '.ts', 'w').write(' '.join(TSN))
print('wrote', path, len(out), 'bytes;', body.count('\n'), 'lines')
```
